```python
import torch

def _softmax(x, axis=-1):
    return torch.softmax(x, dim=axis)
def _gelu(x):
    return torch.nn.functional.gelu(x, approximate="tanh")
def _silu(x):
    return torch.nn.functional.silu(x)
def _sigmoid(x):
    return torch.sigmoid(x)
def _layernorm(x, axis=-1, eps=1e-5):
    m = x.mean(dim=axis, keepdim=True)
    v = x.var(dim=axis, keepdim=True, unbiased=False)
    return (x - m) / torch.sqrt(v + eps)
def _scatter_add(tgt, idx, src, axis=0):
    return tgt.clone().index_add_(axis, idx, src)
def _segment_sum(src, seg, n):
    out = torch.zeros((n,) + src.shape[1:], dtype=src.dtype)
    return out.index_add_(0, seg, src)
def _pad(x, pw):
    flat = tuple(v for pair in reversed(pw) for v in pair)
    return torch.nn.functional.pad(x, flat)

kernel_name = 'gated_mix__sliding_block__moe_arch_mod__prompt'

def setup_inputs():

    _w = (lambda a: (lambda t: t.to(torch.bfloat16) if t.is_floating_point() else t)(torch.as_tensor(a)))
    def _A_setup():
        B, S, D = 1, 2048, 640
        return {
            "x": _w((lambda *s: torch.randn(*s, dtype=torch.bfloat16) * 0.05)(B, S, D)),
            "wqkv": _w((lambda *s: torch.randn(*s, dtype=torch.bfloat16) * 1.6)(D, 3 * D)),
            "wo": _w((lambda *s: torch.randn(*s, dtype=torch.bfloat16) * 0.05)(D, D)),
        }
    _A_in = _A_setup()

    def _B_setup():
        B, S, D, F, C = 1, 2048, 640, 1536, 8
        return {
            "x": _w((lambda *s: torch.randn(*s, dtype=torch.bfloat16) * 0.05)(B, S, D)),
            "w_r": _w((lambda *s: torch.randn(*s, dtype=torch.bfloat16) * 3.2)(D)),
            "w_gate": _w((lambda *s: torch.randn(*s, dtype=torch.bfloat16) * 0.4)(D, F)),
            "w_up": _w((lambda *s: torch.randn(*s, dtype=torch.bfloat16) * 0.4)(D, F)),
            "w_down": _w((lambda *s: torch.randn(*s, dtype=torch.bfloat16) * 0.4)(F, D)),
        }
    _B_in = _B_setup()

    return {
        "A_x": _A_in["x"],
        "A_wqkv": _A_in["wqkv"],
        "A_wo": _A_in["wo"],
        "B_x": _B_in["x"],
        "B_w_r": _B_in["w_r"],
        "B_w_gate": _B_in["w_gate"],
        "B_w_up": _B_in["w_up"],
        "B_w_down": _B_in["w_down"],
        "gate_w": _w((lambda *s: torch.randn(*s, dtype=torch.bfloat16) * 0.05)(640) * 16.0),
    }

def reference(A_x, A_wqkv, A_wo, B_x, B_w_r, B_w_gate, B_w_up, B_w_down, gate_w):
    def _A_ref(x, wqkv, wo):
        B, S, D = x.shape
        H = 32; Dh = D // H; W = 256
        qkv = (lambda x, *d: x.permute(*d))((x @ wqkv).reshape(B, S, 3, H, Dh), 2, 0, 3, 1, 4)
        q, k, v = qkv[0], qkv[1], qkv[2]
        scores = torch.einsum("bhqd,bhkd->bhqk", q, k) * (Dh ** -0.5)
        idx = torch.arange(S)
        mask = (idx[:, None] - idx[None, :] >= 0) & (idx[:, None] - idx[None, :] < W)
        scores = torch.where(mask[None, None], scores, -1e9)
        p = _softmax(scores, axis=-1)
        o = torch.einsum("bhqk,bhkd->bhqd", p, v)
        return (lambda x, *d: x.permute(*d))(o, 0, 2, 1, 3).reshape(B, S, D) @ wo

    def _B_ref(x, w_r, w_gate, w_up, w_down):
        B, S, D = x.shape
        C = 8
        r = x @ w_r
        idx = torch.argsort(-r, axis=-1)[:, :C]
        idx_e = (lambda x, n, axis: torch.repeat_interleave(x, n, dim=axis))(idx.reshape(B, C, 1), D, axis=2)
        x_sel = (lambda x, i, axis: torch.take_along_dim(x, i, dim=axis))(x, idx_e, axis=1)
        g = _silu(x_sel @ w_gate)
        u = x_sel @ w_up
        y = (g * u) @ w_down
        r_sel = _sigmoid((lambda x, i, axis: torch.take_along_dim(x, i, dim=axis))(r, idx, axis=1))
        y = y * r_sel.reshape(B, C, 1)
        b_off = (torch.arange(B) * S).reshape(B, 1)
        flat_idx = (idx + b_off).reshape(B * C)
        zero = (x * 0.0).reshape(B * S, D)
        upd = _scatter_add(zero, flat_idx, y.reshape(B * C, D), axis=0)
        return x + upd.reshape(B, S, D)

    x = A_x
    g = _sigmoid((x * gate_w).sum(-1, keepdims=True))
    a = _A_ref(x, A_wqkv, A_wo)
    b = _B_ref(x, B_w_r, B_w_gate, B_w_up, B_w_down)
    return g * a + (1 - g) * b
```

```python
import sys
from gen_common import *
from gen_k1 import gen_k1, K1_BLOCK, K1_LDS
HDR = open("gated_mix__sliding_block__moe_arch_mod__prompt.s.ref").read().split("; Override launch")[0] if False else ""
def build(which="123", diag=False, **opt):
    lines = []; body = []
    if "1" in which:
        lines.append(f"; @launch kernel=k1_qkv_kernel grid=(256,1,1) block=({K1_BLOCK},1,1) lds={K1_LDS}")
        body.append(gen_k1(diag, **{k[3:]: v for k, v in opt.items() if k.startswith("k1_")}))
    if "2" in which:
        from gen_k2 import gen_k2, K2_LDS, K2_GRID
        lines.append(f"; @launch kernel=k2_attn_kernel grid=({K2_GRID},1,1) block=(256,1,1) lds={K2_LDS}")
        body.append(gen_k2(diag, **{k[3:]: v for k, v in opt.items() if k.startswith("k2_")}))
    if "3" in which:
        from gen_k3 import gen_k3, K3_LDS, K3_BLOCK
        lines.append(f"; @launch kernel=k3_out_kernel grid=(256,1,1) block=({K3_BLOCK},1,1) lds={K3_LDS}")
        body.append(gen_k3(diag, **{k[3:]: v for k, v in opt.items() if k.startswith("k3_")}))
    return "\n".join(lines) + '\n.amdgcn_target "amdgcn-amd-amdhsa--gfx950"\n' + "\n".join(body) + ".text\n.code_end:\n"
if __name__ == "__main__":
    import argparse
    ap = argparse.ArgumentParser()
    ap.add_argument("out"); ap.add_argument("--which", default="123"); ap.add_argument("--diag", type=int, default=0); ap.add_argument("--opt", default="")
    a = ap.parse_args()
    opt = {kv.split("=")[0]: int(kv.split("=")[1]) for kv in a.opt.split(",") if kv}
    open(a.out, "w").write(build(a.which, a.diag, **opt))
```

```python
S = 2048; D = 640; H = 32; DH = 20; F = 1536
CH = S * 16
WS_QK = 0
VROW = D * 16
WS_V = WS_QK + 160 * CH
WS_O = WS_V + 256 * VROW
WS_WO = WS_O + 80 * CH
WS_G = WS_WO + D * D * 2
WS_CAND = WS_G + S * 4
WS_SEL = WS_CAND + 2048
WS_CNT = WS_SEL + 512
WS_GU = WS_CNT + 4096
WS_YP = WS_GU + 240 * 4096
VKB = 672
NMOE = 24
NUNIT = 240
WS_DIAG = 32 << 20
WS_BYTES = 268435456

class K:
    def __init__(self, name, diag=False):
        self.name = name; self.L = []; self.diag = diag; self.nst = 0; self.lbl = 0
    def e(self, s):
        for ln in s.strip("\n").split("\n"):
            self.L.append("    " + ln.strip())
    def label(self, l): self.L.append(f"{l}:")
    def newlabel(self, p="L"):
        self.lbl += 1; return f".{self.name[:2]}_{p}{self.lbl}"
    def c(self, s): self.L.append(f"    ; {s}")
    def srd(self, d, b, nbytes):
        self.e(f"s_mov_b32 s{d}, s{b}\ns_mov_b32 s{d+1}, s{b+1}\ns_mov_b32 s{d+2}, {nbytes}\ns_mov_b32 s{d+3}, 0x20000")
    def stamp(self, i):
        if self.diag: self.e(f"{'s_memtime' if self.diag == 2 else 's_memrealtime'} s[{80+2*i}:{81+2*i}]")
    def dump_stamps(self, n, wsrd, kidx, vtmp, vtmp2, wave_sgpr):
        if not self.diag: return
        self.e("s_waitcnt lgkmcnt(0)")
        self.e(f"s_lshl_b32 s78, s2, 4\ns_add_u32 s78, s78, s{wave_sgpr}\ns_lshl_b32 s78, s78, 6\ns_add_u32 s78, s78, {WS_DIAG + (kidx << 20)}")
        self.e(f"s_mov_b64 exec, 1\nv_mov_b32 v{vtmp2}, 0")
        for i in range(n):
            self.e(f"v_mov_b32 v{vtmp}, s{80+2*i}\nbuffer_store_dword v{vtmp}, v{vtmp2}, s[{wsrd}:{wsrd+3}], s78 offen offset:{4*i}")
        self.e(f"s_getreg_b32 s79, hwreg(HW_REG_XCC_ID)\nv_mov_b32 v{vtmp}, s79\nbuffer_store_dword v{vtmp}, v{vtmp2}, s[{wsrd}:{wsrd+3}], s78 offen offset:60")
        self.e(f"s_getreg_b32 s79, hwreg(HW_REG_HW_ID)\nv_mov_b32 v{vtmp}, s79\nbuffer_store_dword v{vtmp}, v{vtmp2}, s[{wsrd}:{wsrd+3}], s78 offen offset:56")
    def text(self, vgpr, sgpr=102):
        acc = (vgpr + 3) // 4 * 4
        return (f".text\n.globl {self.name}\n.p2align 8\n.type {self.name},@function\n{self.name}:\n" + "\n".join(self.L) + "\n"
                + f""".section .rodata,"a"
.p2align 6
.amdhsa_kernel {self.name}
  .amdhsa_next_free_vgpr {vgpr}
  .amdhsa_next_free_sgpr {sgpr}
  .amdhsa_accum_offset {acc}
  .amdhsa_group_segment_fixed_size 0
  .amdhsa_kernarg_size 96
  .amdhsa_user_sgpr_count 2
  .amdhsa_user_sgpr_kernarg_segment_ptr 1
  .amdhsa_system_sgpr_workgroup_id_x 1
.end_amdhsa_kernel
""")
def vr(a, n): return f"v[{a}:{a+n-1}]"

FL = {0: "", 1: " nt", 2: " sc1", 3: " sc0 sc1", 4: " sc1 nt", 5: " sc0 sc1 nt", 6: " sc0"}
```

```python
from gen_common import *
import gen_sort as gs

K1_BLOCK = 768
NS = 4
L_W = NS * 32768
L_KEY = L_W + 4096
K1_LDS = L_KEY + 512
RG_COL = 14

def wave_max_u32(k, v):
    for ctl in ("row_shr:1", "row_shr:2", "row_shr:4", "row_shr:8"):
        k.e(f"s_nop 1\nv_max_u32_dpp v{v}, v{v}, v{v} {ctl} row_mask:0xf bank_mask:0xf")
    k.e(f"s_nop 1\nv_max_u32_dpp v{v}, v{v}, v{v} row_bcast:15 row_mask:0xa bank_mask:0xf")
    k.e(f"s_nop 1\nv_max_u32_dpp v{v}, v{v}, v{v} row_bcast:31 row_mask:0xc bank_mask:0xf")

def chunk_order_sgpr(k, n, dst, grp, win):
    base = 0
    for w in win:
        if n < base + w: break
        base += w
    assert w in (1, 2, 4)
    k.e(f"s_add_u32 s{dst}, s{grp}, {n}\ns_and_b32 s{dst}, s{dst}, {w - 1}\ns_add_u32 s{dst}, s{dst}, {base}")

def gen_k1(diag=False, look=3, ld=0, st=2, pf=0, cpf=2, win=1, tlb=0, nost=0, pff=0, pfat=10, mall=0, re=0, tw=0, dry=0, norg=0):
    WIN = {0: [4, 4, 2], 1: [2, 4, 4], 2: [1, 1, 4, 4], 3: [2, 2, 2, 4], 4: [1]*10, 5: [2]*5}[win]
    k = K("k1_qkv_kernel", diag)
    k.stamp(0)
    k.e("""
s_cmp_ge_u32 s2, 256
s_cbranch_scc1 .k1_end
s_load_dwordx4 s[4:7], s[0:1], 0
s_load_dwordx2 s[8:9], s[0:1], 88
v_lshrrev_b32 v1, 6, v0
v_and_b32 v2, 63, v0
s_and_b32 s24, s2, 7
v_readfirstlane_b32 s3, v1
s_lshr_b32 s25, s2, 3
s_lshr_b32 s26, s24, 1
s_lshl_b32 s26, s26, 2
s_and_b32 s27, s25, 3
s_add_u32 s26, s26, s27
s_and_b32 s27, s24, 1
s_lshl_b32 s27, s27, 3
s_lshr_b32 s28, s25, 2
s_add_u32 s27, s27, s28
s_add_u32 s36, s26, s27
""")
    k.c("s3 = wave, s26 = rowblk, s27 = colblk, s36 = rotation group, v2 = lane")
    k.e("s_cmp_ge_u32 s3, 8\ns_cbranch_scc1 .k1_helper")
    k.e("s_cmp_eq_u32 s27, 15\ns_cbranch_scc1 .k1_pack")
    k.e("s_cmp_lt_u32 s3, 4\ns_cbranch_scc1 .k1_compute")
    k.c("loader waves")
    k.e("""
s_sub_u32 s29, s3, 4
s_lshl_b32 s30, s26, 7
s_lshl_b32 s31, s29, 5
s_add_u32 s30, s30, s31
s_mulk_i32 s30, 1280
v_lshrrev_b32 v3, 3, v2
v_mul_u32_u24 v3, 1280, v3
v_add_u32 v3, s30, v3
v_lshrrev_b32 v4, 4, v2
v_and_b32 v5, 7, v2
v_xor_b32 v5, v5, v4
v_lshlrev_b32 v6, 4, v5
v_xor_b32 v7, 64, v6
v_add_u32 v8, v3, v6
v_add_u32 v9, v3, v7
""")
    sa = 8 * 1280 - 1024
    k.e(f"v_add_u32 v9, {sa}, v9\nv_add_u32 v10, {2*sa}, v8\nv_add_u32 v11, {2*sa}, v9")
    k.c("v8..v11 = A voffsets; B voffsets v12..v15")
    k.e("""
s_lshl_b32 s31, s29, 4
s_mulk_i32 s31, 3840
s_lshl_b32 s32, s27, 8
s_add_u32 s31, s31, s32
v_mul_u32_u24 v12, 3840, v4
v_add_u32 v12, s31, v12
v_and_b32 v5, 15, v2
v_lshlrev_b32 v6, 2, v4
v_xor_b32 v5, v5, v6
v_lshlrev_b32 v5, 4, v5
v_add_u32 v12, v12, v5
""")
    sb = 4 * 3840 - 1024
    k.e(f"v_add_u32 v13, {sb}, v12\nv_add_u32 v14, {2*sb}, v12\nv_add_u32 v15, {3*sb}, v12")
    k.e("s_lshl_b32 s33, s29, 12")
    def next_chunk(n):
        chunk_order_sgpr(k, n, 34, 36, WIN)
        k.e(f"s_mul_i32 s35, s34, {64*3840}\ns_lshl_b32 s34, s34, 7")
    next_chunk(0)
    k.e("s_waitcnt lgkmcnt(0)")
    k.stamp(5)
    k.srd(12, 4, S * D * 2)
    k.srd(16, 6, D * 3 * D * 2)
    if diag: k.srd(20, 8, WS_BYTES)
    def issue(c):
        slot = c % NS
        k.e(f"s_add_u32 m0, s33, {slot * 32768}\ns_nop 0")
        for i in range(4):
            k.e(f"buffer_load_dwordx4 v{8+i}, s[12:15], s34 offen offset:{1024*i}{FL[ld]} lds")
        k.e(f"s_add_u32 m0, s33, {slot * 32768 + 16384}\ns_nop 0")
        for i in range(4):
            k.e(f"buffer_load_dwordx4 v{12+i}, s[16:19], s35 offen offset:{1024*i}{FL[ld]} lds")
        if c + 1 < 10: next_chunk(c + 1)
    first = min(look, 2)
    for c in range(first):
        issue(c)
        if c == 0: k.stamp(6)
        if c == 1: k.stamp(7)
    k.stamp(1)
    issued = first
    npf = 0
    def prefetch():
        k.c("warm this XCD's L2 with the MoE weight slices its K2 workgroups read")
        k.e(f"""
s_lshl_b32 s40, s25, 2
s_add_u32 s40, s40, s29
s_min_u32 s40, s40, 89
s_cmp_lt_u32 s40, 30
s_cselect_b32 s41, 40, 48
s_cselect_b32 s42, 0, 30
s_cmp_lt_u32 s40, 60
s_cselect_b32 s41, s41, 56
s_cselect_b32 s42, s42, 60
s_load_dwordx2 s[44:45], s[0:1], s41
s_sub_u32 s42, s40, s42
s_lshl_b32 s42, s42, 6
v_add_u32 v16, s42, v2
v_mul_u32_u24 v17, 0x5556, v16
v_lshrrev_b32 v17, 16, v17
v_mul_u32_u24 v17, {3072 - 384}, v17
s_mul_i32 s43, s24, 384
s_mul_i32 s42, s24, {192*1280}
s_cmp_lt_u32 s40, 60
s_cselect_b32 s43, s43, s42
s_cselect_b32 s42, -1, 0
v_and_b32 v17, s42, v17
v_lshl_add_u32 v16, v16, 7, v17
s_mov_b32 s46, {F*D*2}
s_mov_b32 s47, 0x20000
s_waitcnt lgkmcnt(0)
buffer_load_dword v18, v16, s[44:47], s43 offen{FL[pff]}
""")
    for c in range(10):
        k.e(f"s_waitcnt vmcnt({8 * (issued - c - 1) + (npf if c < pfat else 0)})")
        if c == 0: k.stamp(2)
        if c == 2: k.stamp(8)
        if c == 4: k.stamp(3)
        if c == 9: k.stamp(4)
        k.e("s_barrier")
        n_iss = 0
        while issued < 10 and issued < c + 1 + look and n_iss < (2 if c == 1 else 1):
            assert issued - NS <= c - 1
            issue(issued); issued += 1; n_iss += 1
            if issued == pfat and pf:
                prefetch(); npf = 1
    k.e("s_cmp_lt_u32 s27, 10\ns_cbranch_scc1 .k1_ldend\ns_barrier")
    k.label(".k1_ldend")
    if pf and re: k.e("s_waitcnt vmcnt(0)\nbuffer_load_dword v18, v16, s[44:47], s43 offen" + ("\ns_waitcnt vmcnt(0)" if re == 2 else ""))
    k.dump_stamps(9, 20, 0, 20, 21, 3)
    k.e("s_endpgm")

    k.label(".k1_compute")
    k.e("""
s_lshr_b32 s29, s3, 1
s_and_b32 s30, s3, 1
v_and_b32 v3, 31, v2
v_lshrrev_b32 v4, 5, v2
v_bfe_u32 v5, v2, 1, 3
v_xor_b32 v5, v5, v4
v_lshlrev_b32 v5, 4, v5
v_lshlrev_b32 v6, 7, v3
v_add_u32 v5, v5, v6
s_lshl_b32 s31, s29, 13
v_add_u32 v8, s31, v5
v_xor_b32 v9, 32, v8
v_xor_b32 v10, 64, v8
v_xor_b32 v11, 0x60, v8
""")
    k.c("v8..v11 = A read addr per k-step; B read addr v12 (tn=0), v13 (tn=1); +48: second 64 KB window")
    k.e("""
v_bfe_u32 v5, v2, 2, 2
v_lshl_add_u32 v6, v4, 3, v5
v_lshlrev_b32 v6, 8, v6
s_lshl_b32 s31, s30, 1
v_xor_b32 v7, s31, v5
v_lshl_add_u32 v6, v7, 6, v6
v_bfe_u32 v7, v2, 4, 1
v_lshl_add_u32 v6, v7, 5, v6
v_add_u32 v6, 16384, v6
v_and_b32 v7, 3, v2
s_waitcnt lgkmcnt(0)
""")
    k.srd(20, 8, WS_BYTES)
    k.e("s_cmp_ge_u32 s27, 10\ns_cbranch_scc1 .k1_vpath")

    ACC = 64
    def mainloop(swapped):
        FR = [16, 32]
        for r in range(8, 14): k.e(f"v_add_u32 v{r + 48}, 0x10000, v{r}")
        if tlb:
            k.e("s_mov_b32 exec_lo, 1\ns_mov_b32 exec_hi, 1")
            for i in range(4): k.e(f"buffer_load_dword v{50+i}, v14, s[20:23], s{36+i} offen")
            k.e("s_mov_b64 exec, -1")
        def rd(c, s, setb, part):
            slot = c % NS
            base = (slot % 2) * 32768; w = 48 * (slot // 2)
            if part == 0:
                k.e(f"ds_read_b128 {vr(setb,4)}, v{8+s+w} offset:{base}")
                k.e(f"ds_read_b64_tr_b16 {vr(setb+8,2)}, v{12+w} offset:{base + s*4096}")
                k.e(f"ds_read_b64_tr_b16 {vr(setb+10,2)}, v{12+w} offset:{base + s*4096 + 1024}")
            else:
                k.e(f"ds_read_b64_tr_b16 {vr(setb+12,2)}, v{13+w} offset:{base + s*4096}")
                k.e(f"ds_read_b64_tr_b16 {vr(setb+14,2)}, v{13+w} offset:{base + s*4096 + 1024}")
                k.e(f"ds_read_b128 {vr(setb+4,4)}, v{8+s+w} offset:{base + 4096}")
        def mf(setb, tm, tn, first):
            a = vr(setb + 4 * tm, 4); b = vr(setb + 8 + 4 * tn, 4)
            d = vr(ACC + 16 * (2 * tm + tn), 16)
            x, y = (b, a) if swapped else (a, b)
            k.e(f"v_mfma_f32_32x32x16_bf16 {d}, {x}, {y}, {'0' if first else d}")
        k.e("s_barrier")
        k.stamp(1)
        rd(0, 0, FR[0], 0); rd(0, 0, FR[0], 1)
        for c in range(10):
            for s in range(4):
                cur = FR[(4 * c + s) & 1]; nxt = FR[((4 * c + s) & 1) ^ 1]
                last = (c == 9 and s == 3); first = (c == 0 and s == 0)
                nc, ns = (c, s + 1) if s < 3 else (c + 1, 0)
                if s == 3:
                    k.e("s_waitcnt lgkmcnt(0)")
                    if not last: k.e("s_barrier")
                    if c == 4: k.stamp(2)
                else:
                    k.e("s_waitcnt lgkmcnt(3)")
                mf(cur, 0, 0, first)
                if not last: rd(nc, ns, nxt, 0)
                if s != 3: k.e("s_waitcnt lgkmcnt(4)")
                mf(cur, 0, 1, first)
                if not last: rd(nc, ns, nxt, 1)
                if s != 3: k.e("s_waitcnt lgkmcnt(6)")
                mf(cur, 1, 0, first)
                mf(cur, 1, 1, first)
        k.stamp(3)
    def epilogue(vpath):
        if vpath: k.e("s_barrier")
        for t, (tm, tn) in enumerate([(0,0),(0,1),(1,0),(1,1)]):
            dst = 16 + 8 * t
            if t == 0: k.e("s_nop 8")
            for i in range(8):
                k.e(f"v_cvt_pk_bf16_f32 v{dst+i}, v{ACC+16*t+2*i}, v{ACC+16*t+2*i+1}")
            a, b = (tm, tn) if vpath else (tn, tm)
            if nost and t >= nost: continue
            k.e(f"buffer_store_dwordx4 {vr(dst,4)}, v14, s[20:23], s{36+2*a} offen offset:{512*b}{FL[st]}")
            k.e(f"buffer_store_dwordx4 {vr(dst+4,4)}, v14, s[20:23], s{37+2*a} offen offset:{512*b}{FL[st]}")
        if diag:
            k.e("s_waitcnt vmcnt(0)"); k.stamp(4)
        k.dump_stamps(5, 20, 0, 20, 21, 3)
        k.e("s_endpgm")
    k.e("""
v_and_b32 v14, 1, v7
v_lshrrev_b32 v7, 1, v7
v_lshl_add_u32 v7, v14, 1, v7
v_lshl_add_u32 v12, v7, 3, v6
v_xor_b32 v13, 64, v12
""")
    k.c("store voffset v14 = h*CH + (l&31)*16 ; s36 = base")
    k.e(f"""
v_lshlrev_b32 v14, 15, v4
v_lshl_add_u32 v14, v3, 4, v14
s_lshl_b32 s36, s27, 4
s_lshl_b32 s37, s30, 3
s_add_u32 s36, s36, s37
s_lshl_b32 s36, s36, 15
s_lshl_b32 s37, s26, 11
s_add_u32 s36, s36, s37
s_lshl_b32 s37, s29, 10
s_add_u32 s36, s36, s37
s_add_u32 s37, s36, {2*CH}
s_add_u32 s38, s36, {4*CH}
s_add_u32 s39, s36, {6*CH}
""")
    mainloop(True)
    epilogue(False)
    k.label(".k1_vpath")
    k.c("store voffset v14 = h*VROW + (l&31)*16")
    k.e(f"""
v_lshl_add_u32 v12, v7, 3, v6
v_xor_b32 v13, 64, v12
v_mul_u32_u24 v14, {VROW}, v4
v_lshl_add_u32 v14, v3, 4, v14
s_lshl_b32 s36, s26, 4
s_lshl_b32 s37, s29, 3
s_add_u32 s36, s36, s37
s_mul_i32 s36, s36, {VROW}
s_sub_u32 s37, s27, 10
s_lshl_b32 s37, s37, 11
s_add_u32 s36, s36, s37
s_lshl_b32 s37, s30, 10
s_add_u32 s36, s36, s37
s_add_u32 s36, s36, {WS_V}
s_add_u32 s37, s36, {2*VROW}
s_add_u32 s38, s36, {4*VROW}
s_add_u32 s39, s36, {6*VROW}
""")
    mainloop(False)
    epilogue(True)

    k.label(".k1_helper")
    if cpf:
        k.c("warm this XCD's L2 with the code of all launches: workgroup j touches lines 16j..16j+15")
        k.e(f"""
s_cmp_lg_u32 s3, 8
s_cbranch_scc1 .k1_cpf
s_getpc_b64 s[60:61]
.k1_pc:
s_sub_u32 s60, s60, .k1_pc-k1_qkv_kernel
s_subb_u32 s61, s61, 0
s_lshl_b32 s62, s25, 4
v_add_u32 v60, s62, v2
v_lshlrev_b32 v60, 7, v60
v_min_u32 v60, .code_end-k1_qkv_kernel-4, v60
s_mov_b64 exec, 0xffff
global_load_dword v61, v60, s[60:61]
s_mov_b64 exec, -1
{"s_waitcnt vmcnt(0)" if cpf == 2 else ""}
.k1_cpf:
""")
    if tw:
        k.c("touch one word per page of every buffer that later code uses (address translation warm-up)")
        nl = {16: 8, 12: 64, 21: 8}[tw]
        k.e(f"""
s_cmp_lg_u32 s3, 9
s_cbranch_scc1 .k1_tw
s_load_dwordx4 s[64:67], s[0:1], 40
s_load_dwordx2 s[68:69], s[0:1], 56
s_load_dwordx2 s[70:71], s[0:1], 72
s_mul_i32 s62, s25, {nl if tw != 21 else 0}
v_add_u32 v60, s62, v2
v_lshlrev_b32 v60, {tw}, v60
s_mov_b64 exec, {(1 << nl) - 1 if nl < 64 else -1}
s_waitcnt lgkmcnt(0)
""")
        for i, (p, n) in enumerate(((8, WS_YP + NMOE*20480), (70, S*D*2), (64, F*D*2), (66, F*D*2), (68, F*D*2))):
            k.srd(72, p, n)
            k.e(f"buffer_load_dword v{61+i}, v60, s[72:75], 0 offen")
            if tw == 12 and i == 0:
                k.e(f"s_mov_b32 s63, {8 << 20}\nbuffer_load_dword v{61+i}, v60, s[72:75], s63 offen")
        k.e("s_mov_b64 exec, -1")
        k.label(".k1_tw")
    k.e(f"""
s_cmp_lg_u32 s27, {RG_COL if not norg else 99}
s_cbranch_scc1 .k1_end
s_sub_u32 s29, s3, 8
s_lshr_b32 s30, s29, 1
s_lshl_b32 s31, s30, 5
s_add_u32 s31, s31, 32
s_load_dwordx2 s[44:45], s[0:1], s31
v_lshlrev_b32 v3, 4, v2
s_and_b32 s31, s29, 1
s_lshl_b32 s31, s31, 10
s_lshl_b32 s32, s29, 10
s_add_u32 m0, s32, {L_W}
s_mov_b32 s46, {D*2}
s_mov_b32 s47, 0x20000
s_lshl_b32 s33, s29, 12
v_add_u32 v4, s33, v3
v_add_u32 v5, 0x10000, v4
v_lshrrev_b32 v6, 4, v2
v_and_b32 v7, 7, v2
v_xor_b32 v7, v7, v6
v_lshlrev_b32 v7, 4, v7
v_add_u32 v7, {L_W}, v7
s_waitcnt lgkmcnt(0)
buffer_load_dwordx4 v3, s[44:47], s31 offen lds
""")
    k.srd(20, 8, WS_BYTES)
    if dry:
        k.c("run the register-only tail once while the first tiles are in flight (brings its code into the instruction cache)")
        k.e("s_mov_b32 s50, 1\ns_branch .k1_tail1")
        k.label(".k1_dryret")
        k.e("s_mov_b32 s50, 0")
    k.e("s_waitcnt vmcnt(0)")
    X, WV, GA = 16, 32, 48
    for c in range(10):
        slot = c % NS
        chunk_order_sgpr(k, c, 34, 36, WIN)
        k.e("s_lshl_b32 s34, s34, 7\nv_add_u32 v8, s34, v7\nv_xor_b32 v9, 64, v8\ns_barrier")
        for i in range(4):
            k.e(f"ds_read_b128 {vr(X+4*i,4)}, v{4 + slot//2} offset:{(slot % 2)*32768 + 1024*i}")
        for par in range(2):
            k.e(f"ds_read_b128 {vr(WV+8*par,4)}, v{8+par}\nds_read_b128 {vr(WV+8*par+4,4)}, v{8+par} offset:2048")
        k.e("s_waitcnt lgkmcnt(0)")
        for e in range(4):
            for i in range(4):
                for kind in range(2):
                    acc = GA + 4 * (1 - kind) + i
                    k.e(f"v_dot2_f32_bf16 v{acc}, v{X+4*i+e}, v{WV+8*(i&1)+4*kind+e}, {'0' if c == 0 and e == 0 else f'v{acc}'}")
    k.stamp(1)
    RA = GA + 4
    k.label(".k1_tail1")
    k.e("s_nop 2")
    for ctl in ("quad_perm:[1,0,3,2]", "quad_perm:[2,3,0,1]", "row_half_mirror"):
        for r in range(GA, GA + 8):
            k.e(f"v_add_f32_dpp v{r}, v{r}, v{r} {ctl} row_mask:0xf bank_mask:0xf")
    k.e("""
s_mov_b32 s56, 0x22222222
s_mov_b32 s57, s56
s_mov_b32 s58, 0x44444444
s_mov_b32 s59, s58
s_mov_b32 s60, 0x88888888
s_mov_b32 s61, s60
""")
    for base in (GA, RA):
        for p in range(1, 4):
            k.e(f"v_cndmask_b32 v{base}, v{base}, v{base+p}, s[{54+2*p}:{55+2*p}]")
    k.c("lanes with (l&7)<4: local row = 32w + 8*(l&3) + (l>>3)")
    k.e(f"""
v_cvt_pk_bf16_f32 v{GA}, 0, v{GA}
v_cvt_pk_bf16_f32 v{RA}, 0, v{RA}
v_mul_f32 v{GA}, 0xbfb8aa3b, v{GA}
v_exp_f32 v{GA}, v{GA}
v_and_b32 v8, 3, v2
v_lshrrev_b32 v10, 3, v2
v_lshl_add_u32 v8, v8, 3, v10
v_add_f32 v{GA}, 1.0, v{GA}
v_rcp_f32 v{GA}, v{GA}
s_lshl_b32 s31, s29, 5
v_add_u32 v8, s31, v8
v_ashrrev_i32 v9, 31, v{RA}
v_cvt_pk_bf16_f32 v{GA}, 0, v{GA}
v_or_b32 v9, 0x80000000, v9
v_xor_b32 v9, v9, v{RA}
v_and_b32 v9, 0xffff0000, v9
s_lshl_b32 s30, s26, 7
s_sub_u32 s37, 2047, s30
v_sub_u32 v10, s37, v8
v_or_b32 v9, v9, v10
v_lshlrev_b32 v8, 2, v8
v_add_u32 v10, {L_KEY}, v8
s_lshl_b32 s51, s26, 9
s_add_u32 s51, s51, {WS_G}
{"s_cmp_eq_u32 s50, 1" if dry else ""}
{"s_cbranch_scc1 .k1_tail2" if dry else ""}
s_mov_b32 exec_lo, 0x0f0f0f0f
s_mov_b32 exec_hi, 0x0f0f0f0f
ds_write_b32 v10, v9
buffer_store_dword v{GA}, v8, s[20:23], s51 offen sc1
s_mov_b64 exec, -1
s_waitcnt lgkmcnt(0)
""")
    k.stamp(2)
    k.e(f"""
s_barrier
s_cmp_lg_u32 s3, 8
s_cbranch_scc1 .k1_end
v_lshlrev_b32 v8, 3, v2
v_add_u32 v8, {L_KEY}, v8
ds_read_b64 v[10:11], v8
""")
    k.label(".k1_tail2")
    gs.masks(k, 38, 40)
    k.e("s_waitcnt lgkmcnt(0)")
    ra, rb = gs.sort8_full(k, [(10, 12, 13), (11, 14, 15)], 38, 40)
    top = gs.top8_sorted_lists(k, ra[0], rb[0], ra[1], ra[2], 38, 40)
    if dry: k.e("s_cmp_eq_u32 s50, 1\ns_cbranch_scc1 .k1_dryret")
    k.e(f"""
v_lshlrev_b32 v8, 2, v2
s_lshl_b32 s36, s26, 7
s_add_u32 s36, s36, {WS_CAND}
s_mov_b32 exec_hi, 0
buffer_store_dword v{top}, v8, s[20:23], s36 offen sc1
""")
    if diag:
        k.stamp(3); k.e("s_waitcnt vmcnt(0)"); k.stamp(4)
        k.dump_stamps(5, 20, 0, 20, 21, 3)
    k.e("s_endpgm")

    k.label(".k1_pack")
    k.e(f"""
s_load_dwordx2 s[10:11], s[0:1], 16
v_and_b32 v3, 15, v2
v_lshrrev_b32 v4, 4, v2
v_lshlrev_b32 v6, 4, v3
v_lshlrev_b32 v7, 4, v2
s_mul_i32 s33, s3, 7168
s_mul_i32 s34, s26, 51200
s_add_u32 s34, s34, s33
s_mov_b32 m0, s33
s_add_u32 s35, s34, 4096
s_waitcnt lgkmcnt(0)
""")
    k.srd(20, 8, WS_BYTES); k.srd(16, 10, D * D * 2)
    for i in range(4): k.e(f"buffer_load_dwordx4 v7, s[16:19], s34 offen offset:{1024*i} lds")
    k.e("s_add_u32 m0, s33, 4096\ns_nop 0")
    for i in range(3): k.e(f"buffer_load_dwordx4 v7, s[16:19], s35 offen offset:{1024*i} lds")
    k.c("wave = column block; lane group G = tile (ops 0..4) or k-group (ops 5,6: tile 4)")
    k.e(f"""
v_bfe_u32 v14, v2, 2, 2
v_and_b32 v15, 3, v2
v_mul_u32_u24 v16, 1280, v14
s_mul_i32 s33, s3, 160
v_add_u32 v16, s33, v16
v_lshl_add_u32 v17, v15, 4, v16
v_lshrrev_b32 v18, 1, v4
v_lshl_add_u32 v17, v18, 6, v17
v_and_b32 v18, 1, v4
v_lshl_add_u32 v17, v18, 3, v17
v_lshl_add_u32 v18, v15, 3, v16
v_mul_u32_u24 v19, {8*1280}, v4
v_add_u32 v19, v19, v18
v_lshl_add_u32 v20, v4, 10, v6
s_mul_i32 s34, s26, 5
v_add_u32 v21, s34, v4
v_lshrrev_b32 v22, 2, v21
v_mul_u32_u24 v22, 5120, v22
v_and_b32 v21, 3, v21
v_lshl_add_u32 v21, v21, 8, v22
v_add_u32 v21, v21, v6
s_mul_i32 s35, s3, 102400
s_add_u32 s35, s35, {WS_WO}
s_waitcnt vmcnt(0)
s_barrier
""")
    for kg in range(5):
        for tt in range(2):
            k.e(f"ds_read_b64_tr_b16 {vr(64+4*kg+2*tt,2)}, v17 offset:{kg*10240 + tt*5120}")
    for tt in range(2): k.e(f"ds_read_b64_tr_b16 {vr(84+2*tt,2)}, v19 offset:{128 + tt*5120}")
    for tt in range(2): k.e(f"ds_read_b64_tr_b16 {vr(88+2*tt,2)}, v18 offset:{4*10240 + 128 + tt*5120}")
    for kg in range(5):
        k.e(f"""
s_add_u32 s36, s34, {kg}
s_lshr_b32 s37, s36, 2
s_mulk_i32 s37, 5120
s_and_b32 s36, s36, 3
s_lshl_b32 s36, s36, 8
s_add_u32 s36, s36, s37
s_add_u32 s36, s36, s35
s_waitcnt lgkmcnt({12 - 2*kg})
buffer_store_dwordx4 {vr(64+4*kg,4)}, v20, s[20:23], s36 offen sc1
""")
    k.e(f"""
s_add_u32 s35, s35, 4096
s_add_u32 s36, s36, 4096
s_waitcnt lgkmcnt(0)
buffer_store_dwordx4 v[84:87], v21, s[20:23], s35 offen sc1
s_mov_b64 exec, 0xffff
buffer_store_dwordx4 v[88:91], v6, s[20:23], s36 offen sc1
""")
    k.c("zero the hand-off counters of the next launch")
    k.e(f"""
s_cmp_lg_u32 s26, 0
s_cbranch_scc1 .k1_nozero
s_cmp_ge_u32 s3, 3
s_cbranch_scc1 .k1_nozero
s_mov_b64 exec, -1
v_mov_b32 v24, 0
v_mov_b32 v25, 0
v_mov_b32 v26, 0
v_mov_b32 v27, 0
s_lshl_b32 s37, s3, 10
s_add_u32 s37, s37, {WS_CNT}
buffer_store_dwordx4 v[24:27], v7, s[20:23], s37 offen sc1
.k1_nozero:
""")
    if mall:
        k.c("pull MoE weights from HBM: each wave touches 'mall' x 8 KB")
        k.e(f"""
s_mov_b64 exec, -1
s_load_dwordx4 s[40:43], s[0:1], 40
s_lshl_b32 s36, s26, 3
s_add_u32 s36, s36, s3
s_mul_i32 s36, s36, 15360
v_lshlrev_b32 v7, 7, v2
s_waitcnt lgkmcnt(0)
""")
        k.srd(44, 40, F * D * 2); k.srd(48, 42, F * D * 2)
        k.e("s_add_u32 s37, s36, 7168")
        seq = [(44, 36), (48, 36), (44, 37), (48, 37)]
        for i in range(mall):
            k.e(f"buffer_load_dword v{30+i}, v7, s[{seq[i][0]}:{seq[i][0]+3}], s{seq[i][1]} offen")
        k.e("s_waitcnt vmcnt(0)")
    if diag:
        k.stamp(1); k.stamp(2); k.stamp(3); k.e("s_waitcnt vmcnt(0)"); k.stamp(4)
        k.dump_stamps(5, 20, 0, 20, 21, 3)
    k.label(".k1_end")
    k.e("s_endpgm")
    return k.text(128)
```

```python
from gen_common import *
import gen_sort as gs
import struct, math

K2_GRID = NUNIT + 512
K2_LDS = 40960
L_KT = 12288; L_BIAS = 18432; L_V = 24576
L_RED = 40960
def f2u(x): return struct.unpack("<I", struct.pack("<f", x))[0]
LOG2E = 1.4426950408889634
SCALE = struct.unpack("<f", struct.pack("<f", 20 ** -0.5))[0]

def gen_k2(diag=False, emul=0, pf=1, noattn=0, vearly=1, early=0, wfl=1, prio=3, ost=0, aprio=0, pair=1):
    k = K("k2_attn_kernel", diag)
    k.stamp(0)
    k.e(f"""
s_cmp_ge_u32 s2, {K2_GRID}
s_cbranch_scc1 .k2_end
s_load_dwordx2 s[8:9], s[0:1], 88
v_lshrrev_b32 v1, 6, v0
v_and_b32 v2, 63, v0
s_cmp_lt_u32 s2, {NUNIT}
v_readfirstlane_b32 s3, v1
s_cbranch_scc1 .k2_moe
s_and_b32 s25, s2, 7
s_lshr_b32 s24, s2, 3
s_sub_u32 s24, s24, {NUNIT // 8}
s_lshl_b32 s25, s25, 2
s_and_b32 s26, s24, 3
s_add_u32 s26, s26, s25
s_lshr_b32 s27, s24, 2
""")
    if pair: k.e("s_and_b32 s27, s27, 7\ns_lshl_b32 s27, s27, 1\ns_lshr_b32 s28, s24, 5\ns_add_u32 s27, s27, s28")
    if aprio: k.e("s_setprio 3")
    if noattn: k.e("s_endpgm")
    k.c("s26 = head, s27 = query group (128 rows), s3 = wave")
    k.e(f"""
s_lshr_b32 s28, s26, 1
s_and_b32 s29, s26, 1
s_mulk_i32 s28, 5
s_mul_i32 s30, s29, 3
s_add_u32 s30, s30, s28
s_add_u32 s31, s28, 2
s_lshl_b32 s30, s30, 15
s_lshl_b32 s31, s31, 15
s_lshl_b32 s32, s27, 11
s_mul_i32 s33, s3, 1536
s_add_u32 s34, s32, s33
s_add_u32 s34, s34, {80*CH - 4096}
s_add_u32 s35, s34, s30
s_add_u32 s36, s35, {CH}
s_add_u32 s37, s34, s31
v_lshlrev_b32 v3, 4, v2
s_mul_i32 s38, s26, 320
s_mul_i32 s39, s27, {16*VROW}
s_add_u32 s38, s38, s39
s_mul_i32 s39, s3, {12*VROW}
s_add_u32 s38, s38, s39
s_add_u32 s38, s38, {WS_V - 32*VROW}
s_mul_i32 s39, s3, {6*VKB}
s_waitcnt lgkmcnt(0)
""")
    k.srd(20, 8, WS_BYTES)
    k.c("K planes -> LDS")
    for r in range(3):
        k.e(f"s_add_u32 m0, s33, {r*6144}\ns_nop 0\nbuffer_load_dwordx4 v3, s[20:23], s{35+r} offen lds")
    k.e("s_mov_b32 exec_hi, 0")
    for r in range(3):
        k.e(f"s_add_u32 m0, s33, {r*6144}\ns_nop 0\nbuffer_load_dwordx4 v3, s[20:23], s{35+r} offen offset:1024 lds")
    k.e("s_mov_b64 exec, -1")
    QM, QT = 16, 20
    k.c("Q fragments; v4 = (l&31)*16, v5 = h, v6 = main voffset")
    k.e(f"""
v_and_b32 v7, 31, v2
v_lshlrev_b32 v4, 4, v7
v_lshrrev_b32 v5, 5, v2
v_lshl_add_u32 v6, v5, 15, v4
s_lshl_b32 s40, s3, 9
s_add_u32 s40, s40, s32
s_add_u32 s41, s40, s30
s_add_u32 s42, s40, s31
s_lshl_b32 s43, s29, 3
s_add_u32 s42, s42, s43
buffer_load_dwordx4 {vr(QM,4)}, v6, s[20:23], s41 offen
buffer_load_dwordx2 {vr(QT,2)}, v4, s[20:23], s42 offen
""")
    k.c("V gather offsets: lane = (run l/21, row l%21); one instruction moves 3 runs (63 lanes)")
    k.e(f"""
v_mul_u32_u24 v14, 3121, v2
v_lshrrev_b32 v14, 16, v14
v_mul_u32_u24 v14, {VROW - 336}, v14
v_add_u32 v14, v14, v3
v_mov_b32 v24, 0x3f803f80
v_mov_b32 v25, v24
v_mov_b32 v26, v24
v_mov_b32 v27, v24
v_mul_u32_u24 v15, 336, v2
v_add_u32 v15, s39, v15
s_mov_b64 exec, 0xfff
ds_write_b128 v15, v[24:27] offset:{L_V + 320}
s_mov_b64 exec, -1
""")
    def vdma():
        k.e("s_mov_b32 exec_lo, 0xffefffff\ns_mov_b32 exec_hi, 0x3ffffdff")
        for i in range(4):
            k.e(f"s_add_u32 m0, s39, {L_V + 1008*i}\ns_nop 0\nbuffer_load_dwordx4 v14, s[20:23], s38 offen lds")
            if i < 3: k.e(f"s_add_u32 s38, s38, {3*VROW}")
        k.e("s_mov_b64 exec, -1")
    def wopf():
        if pf:
            k.c("warm this XCD's L2 with the packed wo for the last launch")
            k.e(f"""
s_lshl_b32 s38, s24, 2
s_add_u32 s38, s38, s3
s_mulk_i32 s38, 3200
s_add_u32 s38, s38, {WS_WO}
v_lshlrev_b32 v15, 7, v2
s_mov_b64 exec, 0x1ffffff
buffer_load_dword v14, v15, s[20:23], s38 offen
s_mov_b64 exec, -1
""")
    if vearly: vdma()
    if aprio: k.e("s_setprio 0")
    k.c("bias units (invalid key blocks), K/V read addresses")
    KF = [24, 28, 136, 140]; KT = [32, 36, 144, 148]
    k.e(f"""
s_lshl_b32 s44, s27, 2
s_sub_u32 s44, 8, s44
v_cmp_gt_i32 vcc, s44, v2
v_mov_b32 v9, 0xf149
v_mov_b32 v11, 0
v_lshlrev_b32 v8, 9, v2
v_cndmask_b32 v10, 0, v9, vcc
s_mov_b64 exec, 0xfff
ds_write_b64 v8, v[10:11] offset:{L_BIAS}
s_mov_b64 exec, -1
s_lshl_b32 s44, s3, 9
v_mul_u32_u24 v8, 6144, v5
v_add3_u32 v8, v8, v4, s44
v_add_u32 v9, s43, v4
v_cmp_eq_u32 vcc, 1, v5
v_mov_b32 v10, 6144
s_add_u32 s44, s44, {L_KT}
v_cndmask_b32 v9, v9, v10, vcc
v_add_u32 v9, s44, v9
""")
    k.c("v8 = K main read addr, v9 = K tail read addr; V row map -> v10")
    k.e(f"""
v_bfe_u32 v10, v2, 2, 1
v_bfe_u32 v11, v2, 3, 1
v_and_b32 v12, 3, v2
v_lshl_add_u32 v12, v10, 3, v12
v_lshl_add_u32 v12, v11, 2, v12
s_lshl_b32 s45, s29, 2
v_add_u32 v12, s45, v12
s_lshl_b32 s45, s29, 4
v_subrev_u32 v13, s45, v7
v_cmp_gt_u32 s[46:47], 16, v7
v_cmp_gt_u32 s[48:49], 20, v7
v_mov_b32 v{KT[0]+2}, 0
v_mov_b32 v{KT[0]+3}, 0
v_cndmask_b32 v12, v13, v12, s[46:47]
v_cndmask_b32 v12, 20, v12, s[48:49]
v_mul_u32_u24 v10, 336, v5
v_lshl_add_u32 v10, v12, 4, v10
s_mul_i32 s45, s3, {2*VKB}
s_add_u32 s45, s45, {L_V}
v_add_u32 v10, s45, v10
v_mov_b32 v{KT[1]+2}, 0
v_mov_b32 v{KT[1]+3}, 0
v_mov_b32 v{QT+2}, 0
v_mov_b32 v{QT+3}, 0
v_mov_b32 v{KT[2]+2}, 0
v_mov_b32 v{KT[2]+3}, 0
v_mov_b32 v{KT[3]+2}, 0
v_mov_b32 v{KT[3]+3}, 0
""")
    MS = 48
    for i in range(16):
        j, r = i >> 2, i & 3
        k.e(f"s_mov_b32 s{MS+2*i}, {(0xffffffff << (8*j+r)) & 0xffffffff:#x}\ns_mov_b32 s{MS+2*i+1}, {(0xffffffff << (8*j+4+r)) & 0xffffffff:#x}")
    cexp = LOG2E if emul else LOG2E * SCALE
    k.e(f"s_mov_b32 s44, {f2u(cexp):#x}\ns_mov_b32 s45, s44\ns_mov_b32 s46, {f2u(SCALE):#x}\ns_mov_b32 s47, s46")
    k.e(f"""
v_mov_b32 v11, 0x3f80
s_waitcnt vmcnt({4 if vearly else 0})
v_cndmask_b32 v{QT}, v{QT}, v11, vcc
v_cndmask_b32 v{QT+1}, v{QT+1}, v{QT+2}, vcc
s_waitcnt lgkmcnt(0)
""")
    k.stamp(1)
    k.e("s_barrier")
    k.stamp(2)
    if not vearly: vdma()
    SB = [40 + 16 * b for b in range(8)]
    order = [0, 8, 1, 2, 3, 4, 5, 6, 7]
    dstblk = {0: 0, 8: 7, **{s: s for s in range(1, 8)}}
    M0, M1 = 12, 13
    kb = [0, 1, 2, 3, 0, 1, 2, 0, 1]
    kissue = {0: [4], 1: [5], 2: [6], 4: [7], 5: [8]}
    def kread(n):
        s = order[n]
        k.e(f"ds_read_b128 {vr(KF[kb[n]],4)}, v8 offset:{512*s}\nds_read_b64 {vr(KT[kb[n]],2)}, v9 offset:{512*s}")
    firstmax = [True, True]
    def valu1(b):
        base = SB[b]
        if emul:
            for i in range(16): k.e(f"v_cvt_pk_bf16_f32 v{base+i}, 0, v{base+i}")
            for i in range(8): k.e(f"v_pk_mul_f32 {vr(base+2*i,2)}, {vr(base+2*i,2)}, s[46:47]")
            for i in range(16): k.e(f"v_cvt_pk_bf16_f32 v{base+i}, 0, v{base+i}")
        for i in range(8):
            m = (M0, M1)[i & 1]
            if firstmax[i & 1]:
                k.e(f"v_max_f32 v{m}, v{base+2*i}, v{base+2*i+1}"); firstmax[i & 1] = False
            else:
                k.e(f"v_max3_f32 v{m}, v{m}, v{base+2*i}, v{base+2*i+1}")
    for n in range(4): kread(n)
    nrd = 4
    for n in range(9):
        d = SB[dstblk[order[n]]]
        k.e(f"s_waitcnt lgkmcnt({2 * (nrd - n - 1)})")
        k.e(f"v_mfma_f32_32x32x16_bf16 {vr(d,16)}, {vr(KF[kb[n]],4)}, {vr(QM,4)}, 0")
        k.e(f"v_mfma_f32_32x32x16_bf16 {vr(d,16)}, {vr(KT[kb[n]],4)}, {vr(QT,4)}, {vr(d,16)}")
        for m in kissue.get(n, []):
            kread(m); nrd += 1
        if n == 3:
            k.e("s_nop 1")
            for i in range(16):
                k.e(f"v_cndmask_b32 v{SB[0]+i}, v{SB[0]+i}, v{SB[7]+i}, s[{MS+2*i}:{MS+2*i+1}]")
            valu1(0)
        elif n > 3:
            valu1(n - 3)
    valu1(6)
    k.stamp(3)
    VF = [24, 28, 32, 36]
    k.e("s_waitcnt vmcnt(0)\ns_barrier")
    pvslots = [1, 2, 3, 4, 5, 6, 7, 0, 8]
    def vread(n):
        s = pvslots[n]
        for hh in range(2):
            k.e(f"ds_read_b128 {vr(VF[2*(n&1)+hh],4)}, v10 offset:{(2*s+hh)*VKB}")
    vread(0); vread(1)
    k.e("s_nop 3")
    valu1(7)
    k.e(f"""
v_max_f32 v{M0}, v{M0}, v{M1}
v_mov_b32 v{M1}, v{M0}
s_nop 1
v_permlane32_swap_b32 v{M0}, v{M1}
s_nop 1
v_max_f32 v{M0}, v{M0}, v{M1}
v_mul_f32 v{M0}, s44, v{M0}
""")
    def expblk(b):
        base = SB[b]
        for i in range(8):
            k.e(f"v_pk_fma_f32 {vr(base+2*i,2)}, {vr(base+2*i,2)}, s[44:45], {vr(M0,2)} op_sel_hi:[1,1,0] neg_lo:[0,0,1] neg_hi:[0,0,1]")
        for i in range(16): k.e(f"v_exp_f32 v{base+i}, v{base+i}")
    def cvtblk(src, dst):
        for i in range(8): k.e(f"v_cvt_pk_bf16_f32 v{dst+i}, v{src+2*i}, v{src+2*i+1}")
    O = SB[2]
    first = [True]
    def pv(n, p):
        for hh in range(2):
            k.e(f"v_mfma_f32_32x32x16_bf16 {vr(O,16)}, {vr(VF[2*(n&1)+hh],4)}, {vr(p+4*hh,4)}, {'0' if first[0] else vr(O,16)}")
            first[0] = False
    expblk(1); cvtblk(SB[1], SB[1]); expblk(2); cvtblk(SB[2], SB[1] + 8)
    k.e("s_waitcnt lgkmcnt(2)")
    k.e("s_nop 0")
    pv(0, SB[1]); vread(2)
    k.e("s_waitcnt lgkmcnt(2)")
    pv(1, SB[1] + 8); vread(3)
    for n in range(2, 7):
        b = n + 1
        expblk(b); cvtblk(SB[b], SB[b])
        k.e("s_waitcnt lgkmcnt(2)\ns_nop 0")
        pv(n, SB[b]); vread(n + 2)
        if n == 4: wopf()
    expblk(0)
    T = SB[3]
    for i in range(16):
        k.e(f"v_cndmask_b32 v{T+i}, 0, v{SB[0]+i}, s[{MS+2*i}:{MS+2*i+1}]")
    cvtblk(SB[0], SB[0]); cvtblk(T, T)
    for i in range(8): k.e(f"v_xor_b32 v{SB[0]+i}, v{SB[0]+i}, v{T+i}")
    k.e("s_waitcnt lgkmcnt(0)\ns_nop 0")
    pv(8, T); pv(7, SB[0])
    k.e(f"s_add_u32 s41, s41, {WS_O - WS_QK}\ns_add_u32 s42, s42, {WS_O - WS_QK}\ns_nop 9")
    k.e(f"v_rcp_f32 v{M0}, v{O+12}\ns_nop 0")
    for i in range(6):
        k.e(f"v_pk_mul_f32 {vr(O+2*i,2)}, {vr(O+2*i,2)}, {vr(M0,2)} op_sel_hi:[1,0]")
    for i in range(6): k.e(f"v_cvt_pk_bf16_f32 v{24+i}, v{O+2*i}, v{O+2*i+1}")
    k.e(f"buffer_store_dwordx4 v[24:27], v6, s[20:23], s41 offen{FL[ost]}\ns_mov_b32 exec_hi, 0\nbuffer_store_dwordx2 v[28:29], v4, s[20:23], s42 offen")
    k.stamp(4)
    if diag: k.e("s_waitcnt vmcnt(0)")
    k.stamp(5)
    k.dump_stamps(6, 20, 1, 30, 31, 3)
    k.e("s_endpgm")

    L_H = 24576
    k.label(".k2_moe")
    k.e(f"""
s_setprio {2 if aprio else prio}
s_load_dwordx2 s[4:5], s[0:1], 0
s_load_dwordx4 s[12:15], s[0:1], 40
s_load_dwordx2 s[6:7], s[0:1], 56
s_and_b32 s24, s2, 7
s_mulk_i32 s24, 3
s_lshr_b32 s25, s2, 3
s_mul_i32 s46, s25, 26
s_lshr_b32 s46, s46, 8
s_add_u32 s47, s24, s46
s_mulk_i32 s46, 10
s_sub_u32 s46, s25, s46
v_lshrrev_b32 v1, 3, v2
v_lshlrev_b32 v3, 7, v1
v_and_b32 v7, 7, v2
v_lshl_add_u32 v3, v7, 2, v3
v_and_b32 v4, 3, v2
v_lshrrev_b32 v5, 4, v2
s_mov_b32 s26, {WS_CAND}
""")
    k.c("s47 = F slice (64 cols), s46 = K chunk (64 rows). DMA voffsets: v16/v17 (pitch 3072), v18/v19 (pitch 1280)")
    k.e(f"""
v_and_b32 v8, 1, v5
v_lshlrev_b32 v8, 1, v8
v_xor_b32 v8, v8, v7
v_lshlrev_b32 v8, 4, v8
v_xor_b32 v9, 64, v8
v_mad_u32_u24 v16, v1, s78, v8
""".replace("v_mad_u32_u24 v16, v1, s78, v8\n", ""))
    k.e(f"""
v_mul_u32_u24 v12, 3072, v1
v_add_u32 v16, v12, v8
v_add_u32 v17, v12, v9
v_add_u32 v17, {8*3072 - 1024}, v17
v_mul_u32_u24 v12, 1280, v1
v_add_u32 v18, v12, v8
v_add_u32 v19, v12, v9
v_add_u32 v19, {8*1280 - 1024}, v19
s_lshl_b32 s28, s46, 2
s_add_u32 s28, s28, s3
s_mul_i32 s28, s28, {16*3072}
s_lshl_b32 s29, s47, 7
s_add_u32 s28, s28, s29
s_lshl_b32 s29, s47, 2
s_add_u32 s29, s29, s3
s_mul_i32 s29, s29, {16*1280}
s_lshl_b32 s30, s46, 7
s_add_u32 s29, s29, s30
s_lshl_b32 s31, s3, 11
s_mov_b32 s22, {WS_BYTES}
s_mov_b32 s23, 0x20000
s_mov_b32 s34, {F*D*2}
s_mov_b32 s35, 0x20000
s_mov_b32 s42, {F*D*2}
s_mov_b32 s43, 0x20000
s_mov_b32 s18, {F*D*2}
s_mov_b32 s19, 0x20000
s_waitcnt lgkmcnt(0)
s_mov_b32 s20, s8
s_mov_b32 s21, s9
buffer_load_dword v10, v3, s[20:23], s26 offen
buffer_load_dword v11, v3, s[20:23], s26 offen offset:1024
s_mov_b32 s32, s12
s_mov_b32 s33, s13
s_mov_b32 s40, s14
s_mov_b32 s41, s15
s_mov_b32 s16, s6
s_mov_b32 s17, s7
""")
    def wdma():
        for blk, (srd, so, vo) in enumerate(((32, 28, 16), (40, 28, 16), (16, 29, 18))):
            k.e(f"s_add_u32 m0, s31, {8192*blk}\ns_nop 0")
            k.e(f"buffer_load_dwordx4 v{vo}, s[{srd}:{srd+3}], s{so} offen{FL[wfl]} lds\nbuffer_load_dwordx4 v{vo+1}, s[{srd}:{srd+3}], s{so} offen offset:1024{FL[wfl]} lds")
    if early: wdma()
    k.srd(12, 4, S * D * 2)
    k.c("v20 = tr-read addr, v21 = GU store voffset, v22 = lane*16, v23 = H write addr, v24 = H read addr, v25 = YP voffset")
    k.e(f"""
v_bfe_u32 v12, v2, 2, 2
v_lshl_add_u32 v20, v5, 3, v12
v_lshlrev_b32 v20, 7, v20
v_lshl_add_u32 v20, v4, 3, v20
v_lshrrev_b32 v12, 1, v12
v_and_b32 v13, 1, v5
v_lshl_add_u32 v12, v13, 1, v12
v_xor_b32 v12, s3, v12
v_lshl_add_u32 v20, v12, 5, v20
v_lshlrev_b32 v21, 7, v5
v_lshl_add_u32 v21, v7, 4, v21
v_lshlrev_b32 v22, 4, v2
v_mul_u32_u24 v24, 144, v7
v_and_b32 v12, 3, v1
v_lshl_add_u32 v23, v12, 3, v24
v_lshrrev_b32 v12, 5, v2
v_lshl_add_u32 v23, v12, 2, v23
s_lshl_b32 s27, s3, 5
v_add_u32 v23, s27, v23
v_lshl_add_u32 v24, v5, 4, v24
v_mul_u32_u24 v25, 2560, v7
v_lshl_add_u32 v25, v5, 4, v25
s_mul_i32 s48, s47, 40960
s_lshl_b32 s49, s3, 10
s_add_u32 s48, s48, s49
s_add_u32 s48, s48, {WS_GU}
s_lshl_b32 s49, s46, 12
s_add_u32 s49, s49, s48
s_mul_i32 s50, s47, 20480
s_lshl_b32 s51, s46, 8
s_add_u32 s50, s50, s51
s_lshl_b32 s51, s3, 6
s_add_u32 s50, s50, s51
s_add_u32 s50, s50, {WS_YP}
s_lshl_b32 s51, s47, 7
s_add_u32 s51, s51, {WS_CNT}
""")
    k.c("top-8 of the 16 sorted candidate lists")
    gs.masks(k, 36, 38)
    k.e(f"s_waitcnt vmcnt({6 if early else 0})")
    k.stamp(1)
    top = gs.top8_sorted_lists(k, 10, 11, 12, 13, 36, 38)
    X = 28; AG = 36; AD = 52; DG = 60
    k.e(f"""
v_mov_b32 v14, v{top}
v_and_b32 v15, 0xffff, v14
v_sub_u32 v15, 2047, v15
v_mul_u32_u24 v10, 1280, v15
v_lshl_add_u32 v10, v5, 4, v10
s_mov_b32 s44, 0x00ff00ff
s_mov_b32 s45, s44
s_mov_b64 exec, s[44:45]
buffer_load_dwordx4 {vr(X,4)}, v10, s[12:15], s30 offen
buffer_load_dwordx4 {vr(X+4,4)}, v10, s[12:15], s30 offen offset:64
s_mov_b64 exec, -1
""")
    k.stamp(6)
    if not early: wdma()
    k.e(f"s_waitcnt vmcnt({2 if early else 0})\ns_barrier")
    for blk, dst in ((0, AG), (1, AG + 8), (2, AD)):
        for s_ in range(2):
            for t in range(2):
                k.e(f"ds_read_b64_tr_b16 {vr(dst+4*s_+2*t,2)}, v20 offset:{8192*blk + 4096*s_ + 512*t}")
    k.e("s_waitcnt vmcnt(0) lgkmcnt(4)")
    k.stamp(2)
    for s_ in range(2):
        for m in range(2):
            d = vr(DG + 4*m, 4)
            k.e(f"v_mfma_f32_16x16x32_bf16 {d}, {vr(AG+8*m+4*s_,4)}, {vr(X+4*s_,4)}, {'0' if s_ == 0 else d}")
    k.e(f"""
s_nop 7
v_swap_b32 v{DG+2}, v{DG+4}
v_swap_b32 v{DG+3}, v{DG+5}
s_mov_b64 exec, s[44:45]
buffer_store_dwordx4 {vr(DG,4)}, v21, s[20:23], s49 offen sc1
buffer_store_dwordx4 {vr(DG+4,4)}, v21, s[20:23], s49 offen offset:512 sc1
s_mov_b64 exec, -1
v_mov_b32 v26, 0
v_mov_b32 v27, 1
s_waitcnt vmcnt(0)
s_barrier
""")
    k.stamp(7)
    k.e(f"""
s_cmp_lg_u32 s3, 0
s_cbranch_scc1 .k2_ready
s_mov_b64 exec, 1
buffer_atomic_add v27, v26, s[20:23], s51 offen
s_mov_b32 s52, 0x40000
.k2_poll:
buffer_load_dword v12, v26, s[20:23], s51 offen sc1
s_sub_u32 s52, s52, 1
s_waitcnt vmcnt(0)
v_readfirstlane_b32 s53, v12
s_cmp_eq_u32 s52, 0
s_cbranch_scc1 .k2_polled
s_cmp_ge_u32 s53, 10
s_cbranch_scc1 .k2_polled
s_sleep 1
s_branch .k2_poll
.k2_polled:
s_mov_b64 exec, -1
.k2_ready:
s_barrier
""")
    k.stamp(3)
    PS = 68
    for i in range(10):
        k.e(f"buffer_load_dwordx4 {vr(PS+4*i,4)}, v22, s[20:23], s48 offen sc1")
        if i < 9: k.e("s_add_u32 s48, s48, 4096")
    for i in range(1, 10):
        k.e(f"s_waitcnt vmcnt({9 - i})")
        for e in (0, 2): k.e(f"v_pk_add_f32 {vr(PS+e,2)}, {vr(PS+e,2)}, {vr(PS+4*i+e,2)}")
    for e in range(4): k.e(f"v_cvt_pk_bf16_f32 v{PS+e}, 0, v{PS+e}")
    for e in range(2): k.e(f"v_mul_f32 v{PS+4+e}, 0xbfb8aa3b, v{PS+e}")
    for e in range(2): k.e(f"v_exp_f32 v{PS+4+e}, v{PS+4+e}")
    k.e("s_nop 0")
    for e in range(2): k.e(f"v_add_f32 v{PS+4+e}, 1.0, v{PS+4+e}")
    for e in range(2): k.e(f"v_rcp_f32 v{PS+4+e}, v{PS+4+e}")
    k.e("s_nop 0")
    for e in range(2): k.e(f"v_mul_f32 v{PS+e}, v{PS+e}, v{PS+4+e}")
    for e in range(2): k.e(f"v_cvt_pk_bf16_f32 v{PS+e}, 0, v{PS+e}")
    for e in range(2): k.e(f"v_mul_f32 v{PS+e}, v{PS+e}, v{PS+2+e}")
    k.e(f"""
v_cvt_pk_bf16_f32 v{PS}, v{PS}, v{PS+1}
ds_write_b32 v23, v{PS} offset:{L_H}
s_waitcnt lgkmcnt(0)
s_barrier
ds_read_b128 {vr(X,4)}, v24 offset:{L_H}
ds_read_b128 {vr(X+4,4)}, v24 offset:{L_H + 64}
s_waitcnt lgkmcnt(1)
v_mfma_f32_16x16x32_bf16 {vr(DG,4)}, {vr(AD,4)}, {vr(X,4)}, 0
s_waitcnt lgkmcnt(0)
v_mfma_f32_16x16x32_bf16 {vr(DG,4)}, {vr(AD+4,4)}, {vr(X+4,4)}, {vr(DG,4)}
s_mov_b64 exec, s[44:45]
s_nop 6
buffer_store_dwordx4 {vr(DG,4)}, v25, s[20:23], s50 offen
s_mov_b64 exec, -1
""")
    k.c("slice 0, wave 0 publishes the selection and sigmoid(r)")
    k.e(f"""
s_or_b32 s39, s2, s3
s_cmp_lg_u32 s39, 0
s_cbranch_scc1 .k2_nosel
v_and_b32 v17, 0xffff0000, v14
v_ashrrev_i32 v18, 31, v17
v_not_b32 v18, v18
v_or_b32 v18, 0x80000000, v18
v_xor_b32 v17, v17, v18
v_and_b32 v17, 0xffff0000, v17
v_mul_f32 v17, 0xbfb8aa3b, v17
v_exp_f32 v17, v17
v_lshlrev_b32 v18, 2, v2
v_add_f32 v17, 1.0, v17
v_rcp_f32 v17, v17
s_mov_b32 s39, {WS_SEL}
v_cvt_pk_bf16_f32 v17, 0, v17
s_mov_b64 exec, 0xff
buffer_store_dword v15, v18, s[20:23], s39 offen
buffer_store_dword v17, v18, s[20:23], s39 offen offset:32
""")
    k.label(".k2_nosel")
    k.stamp(4)
    if diag: k.e("s_waitcnt vmcnt(0)")
    k.stamp(5)
    k.dump_stamps(8, 20, 1, 30, 31, 3)
    k.label(".k2_end")
    k.e("s_endpgm")
    return k.text(168)
```

```python
from gen_common import *
L_UPD = 102400
K3_LDS = L_UPD + 4 * 6144
K3_BLOCK = 512

def gen_k3(diag=False, rot=1, look=2, olook=2, st=0):
    k = K("k3_out_kernel", diag)
    k.stamp(0)
    k.e(f"""
s_cmp_ge_u32 s2, 256
s_cbranch_scc1 .k3_end
s_load_dwordx2 s[8:9], s[0:1], 88
s_load_dwordx2 s[4:5], s[0:1], 0
s_load_dwordx2 s[10:11], s[0:1], 72
v_lshrrev_b32 v1, 6, v0
v_and_b32 v2, 63, v0
s_and_b32 s24, s2, 7
v_readfirstlane_b32 s3, v1
s_lshr_b32 s25, s2, 3
s_and_b32 s28, s25, 3
s_lshl_b32 s26, s24, 2
s_add_u32 s26, s26, s28
s_lshr_b32 s27, s25, 2
""")
    k.c("s26 = rowblk (64 rows), s27 = colblk (80 cols), s3 = wave; s29 = first stage; s30 = 16-row group")
    if rot:
        k.e("s_add_u32 s29, s27, s28\ns_cmp_ge_u32 s29, 5\ns_cselect_b32 s30, 5, 0\ns_sub_u32 s29, s29, s30\ns_cmp_ge_u32 s29, 5\ns_cselect_b32 s30, 5, 0\ns_sub_u32 s29, s29, s30")
    else:
        k.e("s_mov_b32 s29, 0")
    k.e(f"""
v_lshlrev_b32 v6, 4, v2
s_and_b32 s38, s3, 3
s_lshl_b32 s30, s26, 2
s_add_u32 s30, s30, s38
s_mul_i32 s35, s38, 5120
s_mul_i32 s33, s27, 102400
s_add_u32 s33, s33, s35
s_add_u32 s33, s33, {WS_WO}
s_mul_i32 s34, s29, 20480
v_and_b32 v3, 15, v2
v_lshrrev_b32 v4, 4, v2
v_lshlrev_b32 v5, 15, v4
v_lshl_add_u32 v5, v3, 4, v5
s_lshl_b32 s31, s30, 8
s_add_u32 s31, s31, {WS_O}
s_lshl_b32 s32, s29, 19
s_mov_b32 s22, {WS_BYTES}
s_mov_b32 s23, 0x20000
s_cmp_lt_u32 s3, 4
s_waitcnt lgkmcnt(0)
s_mov_b32 s20, s8
s_mov_b32 s21, s9
s_cbranch_scc1 .k3_compute
""")
    def sel_load():
        k.e(f"s_add_u32 s40, s8, {WS_SEL}\ns_addc_u32 s41, s9, 0\ns_load_dwordx16 s[48:63], s[40:41], 0")
    def routed_mask():
        k.c("s45 = routed slots inside this wave pair's 16 rows, s44 = any routed slot inside the workgroup's 64 rows")
        k.e("s_waitcnt lgkmcnt(0)\ns_mov_b32 s45, 0\ns_mov_b32 s44, 0")
        for i in range(8):
            k.e(f"s_lshr_b32 s46, s{48+i}, 4\ns_cmp_eq_u32 s46, s30\ns_cselect_b32 s47, {1 << i}, 0\ns_or_b32 s45, s45, s47\ns_lshr_b32 s46, s46, 2\ns_cmp_eq_u32 s46, s26\ns_cselect_b32 s44, 1, s44")
    k.c("loader waves: packed wo -> LDS")
    def issue_w(p):
        k.e(f"s_add_u32 s36, s33, s34\ns_add_u32 m0, s35, {p*20480}\ns_add_u32 s37, s36, 4096")
        for n in range(4):
            k.e(f"buffer_load_dwordx4 v6, s[20:23], s36 offen offset:{1024*n} lds")
        k.e(f"s_add_u32 m0, s35, {p*20480 + 4096}\ns_add_u32 s34, s34, 20480\nbuffer_load_dwordx4 v6, s[20:23], s37 offen lds")
        if p < 4: k.e("s_cmp_eq_u32 s34, 102400\ns_cselect_b32 s34, 0, s34")
    NPL = NMOE // 3
    P = 16
    def part_loads():
        k.e(f"s_ff1_i32_b32 s47, s45\ns_mul_i32 s46, s47, 2560\ns_add_u32 s46, s46, s43\ns_mov_b32 exec_hi, 0x0fffffff")
        for i in range(NPL):
            k.e(f"buffer_load_dwordx4 {vr(P+4*i,4)}, v7, s[20:23], s46 offen")
            if i < NPL - 1: k.e(f"s_add_u32 s46, s46, {3*20480}")
        k.e("s_mov_b64 exec, -1")
    for p in range(look): issue_w(p)
    sel_load()
    k.e(f"""
s_mul_i32 s43, s27, 320
s_add_u32 s43, s43, {WS_YP}
s_mul_i32 s42, s38, 6144
s_add_u32 s42, s42, {L_UPD}
v_add_u32 v8, s42, v6
v_mul_u32_u24 v7, 3277, v2
v_lshrrev_b32 v7, 16, v7
v_mul_u32_u24 v7, {20480 - 320}, v7
v_add_u32 v7, v7, v6
""")
    iss = look
    for p in range(5):
        k.e(f"s_waitcnt vmcnt({5*(iss - p - 1)})\ns_barrier")
        if p == 0: routed_mask()
        if iss < 5:
            issue_w(iss); iss += 1
        if p == 3:
            assert iss == 5
            k.e("s_cmp_eq_u32 s45, 0\ns_cbranch_scc0 .k3_ldslow")
    k.e("s_cmp_eq_u32 s44, 0\ns_cbranch_scc1 .k3_end\ns_barrier\ns_endpgm")
    k.label(".k3_ldslow")
    part_loads()
    k.e(f"s_waitcnt vmcnt({NPL})\ns_barrier")
    k.label(".k3_slot")
    k.e("s_waitcnt vmcnt(0)")
    n = NPL
    while n > 1:
        h = n // 2
        for i in range(h):
            for e in range(0, 4, 2):
                k.e(f"v_pk_add_f32 {vr(P+4*i+e,2)}, {vr(P+4*i+e,2)}, {vr(P+4*(i+n-h)+e,2)}")
        n -= h
    k.e(f"""
s_mov_b32 m0, s47
ds_write_b128 v8, {vr(P,4)}
s_movrels_b32 s64, s48
s_movrels_b32 s65, s56
s_and_b32 s64, s64, 15
s_mulk_i32 s64, 320
v_add_u32 v9, s64, v8
s_waitcnt lgkmcnt(0)
ds_read_b128 {vr(P+4,4)}, v8 offset:320
ds_read_b128 {vr(P+8,4)}, v8 offset:640
s_waitcnt lgkmcnt(0)
""")
    for e in range(4): k.e(f"v_add_f32 v{P+e}, v{P+e}, v{P+4+e}")
    for e in range(4): k.e(f"v_add_f32 v{P+e}, v{P+e}, v{P+8+e}")
    for e in range(4): k.e(f"v_cvt_pk_bf16_f32 v{P+e}, 0, v{P+e}")
    for e in range(4): k.e(f"v_mul_f32 v{P+e}, s65, v{P+e}")
    k.e(f"""
s_mov_b64 exec, 0xfffff
ds_write_b128 v9, {vr(P,4)} offset:1024
s_mov_b64 exec, -1
s_bitset0_b32 s45, s47
s_cmp_eq_u32 s45, 0
s_waitcnt lgkmcnt(0)
s_cbranch_scc0 .k3_more
s_barrier
s_endpgm
""")
    k.label(".k3_more")
    part_loads()
    k.e("s_branch .k3_slot")

    k.label(".k3_compute")
    OF = 64
    nload = [0]
    def oload():
        i = nload[0]; nload[0] += 1
        p, q = i // 4, i % 4
        if q == 0: k.e("s_add_u32 s37, s31, s32")
        k.e(f"buffer_load_dwordx4 {vr(OF+4*i,4)}, v5, s[20:23], s37 offen")
        if q < 3: k.e(f"s_add_u32 s37, s37, {4*CH}")
        elif p < 4: k.e(f"s_add_u32 s32, s32, {16*CH}\ns_cmp_eq_u32 s32, {80*CH}\ns_cselect_b32 s32, 0, s32")
    for i in range(4 * olook): oload()
    sel_load()
    XR = 44; GV = 54
    k.srd(12, 4, S * D * 2); k.srd(16, 10, S * D * 2)
    k.c("v14 = token, v13 = x/out voffset (16 B pieces), v12 = (8 B piece)")
    k.e(f"""
v_add_u32 v7, {12*5120}, v6
s_lshl_b32 s38, s30, 4
v_add_u32 v14, s38, v3
v_mul_u32_u24 v13, 1280, v14
v_lshl_add_u32 v12, v4, 3, v13
v_lshl_add_u32 v13, v4, 4, v13
s_mul_i32 s39, s27, 160
v_lshlrev_b32 v15, 2, v14
s_mov_b32 s42, {WS_G}
""")
    tails = [f"buffer_load_dwordx4 {vr(XR,4)}, v13, s[12:15], s39 offen",
             f"buffer_load_dwordx4 {vr(XR+4,4)}, v13, s[12:15], s39 offen offset:64",
             f"buffer_load_dwordx2 {vr(XR+8,2)}, v12, s[12:15], s39 offen offset:128",
             f"buffer_load_dword v{GV}, v15, s[20:23], s42 offen"]
    routed_mask()
    k.stamp(1)
    ACC = 144
    AF = [24, 164]
    def rd(s, setb, ts):
        a = 6 if s < 12 else 7
        off = (s - 12 if s >= 12 else s) * 5120
        for t in ts:
            k.e(f"ds_read_b128 {vr(setb+4*t,4)}, v{a} offset:{off + 1024*t}")
    k.e("s_barrier")
    k.stamp(2)
    rd(0, AF[0], range(5))
    ntail = 0
    for s_ in range(20):
        cur = AF[s_ & 1]; nxt = AF[(s_ & 1) ^ 1]; last = s_ == 19
        if s_ % 4 == 3 and not last: k.e("s_barrier")
        k.e(f"s_waitcnt vmcnt({nload[0] + ntail - s_ - 1})")
        for t in range(5):
            k.e(f"s_waitcnt lgkmcnt({4 if not last else 4 - t})")
            d = vr(ACC + 4*t, 4)
            k.e(f"v_mfma_f32_16x16x32_bf16 {d}, {vr(cur+4*t,4)}, {vr(OF+4*s_,4)}, {'0' if s_ == 0 else d}")
            if not last: rd(s_ + 1, nxt, [t])
        if nload[0] < 20: oload()
        elif ntail < 4:
            k.e(tails[ntail]); ntail += 1
    k.stamp(3)
    XF = 64
    k.e("s_waitcnt vmcnt(0)")
    for i in range(10):
        k.e(f"v_lshlrev_b32 v{XF+2*i}, 16, v{XR+i}\nv_and_b32 v{XF+2*i+1}, 0xffff0000, v{XR+i}")
    k.e(f"v_sub_f32 v{GV+1}, 1.0, v{GV}\ns_cmp_lg_u32 s44, 0\ns_cbranch_scc1 .k3_upd")
    k.label(".k3_fin")
    k.e(f"v_cvt_pk_bf16_f32 v{GV+1}, 0, v{GV+1}")
    for e in range(0, 20, 2): k.e(f"v_pk_mul_f32 {vr(XF+e,2)}, {vr(XF+e,2)}, {vr(GV,2)} op_sel:[0,1] op_sel_hi:[1,1]")
    for e in range(0, 20, 2): k.e(f"v_pk_fma_f32 {vr(XF+e,2)}, {vr(ACC+e,2)}, {vr(GV,2)}, {vr(XF+e,2)} op_sel_hi:[1,0,1]")
    for i in range(10): k.e(f"v_cvt_pk_bf16_f32 v{24+i}, v{XF+2*i}, v{XF+2*i+1}")
    k.e(f"""
buffer_store_dwordx4 v[24:27], v13, s[16:19], s39 offen{FL[st]}
buffer_store_dwordx4 v[28:31], v13, s[16:19], s39 offen offset:64{FL[st]}
buffer_store_dwordx2 v[32:33], v12, s[16:19], s39 offen offset:128{FL[st]}
""")
    k.stamp(4)
    if diag: k.e("s_waitcnt vmcnt(0)")
    k.stamp(5)
    k.dump_stamps(6, 20, 2, 40, 41, 3)
    k.label(".k3_end")
    k.e("s_endpgm")
    k.label(".k3_upd")
    k.e(f"""
s_mul_i32 s42, s3, 6144
s_add_u32 s42, s42, {L_UPD + 1024}
v_mul_u32_u24 v16, 320, v3
v_add_u32 v16, s42, v16
v_lshl_add_u32 v17, v4, 4, v16
v_lshl_add_u32 v16, v4, 5, v16
s_mov_b64 s[66:67], 0
""")
    for i in range(8):
        k.e(f"v_cmp_eq_u32 vcc, s{48+i}, v14\ns_or_b64 s[66:67], s[66:67], vcc")
    k.e("s_barrier")
    U = 84
    for t in range(4):
        k.e(f"ds_read_b128 {vr(U+4*t,4)}, v16 offset:{128*(t>>1) + 16*(t&1)}")
    k.e(f"ds_read_b128 {vr(U+16,4)}, v17 offset:256\ns_mov_b64 exec, s[66:67]\ns_waitcnt lgkmcnt(0)")
    for e in range(0, 20, 2): k.e(f"v_pk_add_f32 {vr(XF+e,2)}, {vr(XF+e,2)}, {vr(U+e,2)}")
    k.e("s_mov_b64 exec, -1\ns_branch .k3_fin")
    return k.text(184)
```

```python
def masks(k, m1, m2):
    k.e(f"s_mov_b32 s{m1}, 0xaaaaaaaa\ns_mov_b32 s{m1+1}, s{m1}\ns_mov_b32 s{m2}, 0xcccccccc\ns_mov_b32 s{m2+1}, s{m2}")
FULL = "row_mask:0xf bank_mask:0xf"
def cx_quad(k, regs, perm, mask):
    pad = "s_nop 1" if len(regs) == 1 else "s_nop 0"
    k.e(pad)
    for v, a, b in regs:
        k.e(f"v_max_u32_dpp v{a}, v{v}, v{v} quad_perm:{perm} {FULL}\nv_min_u32_dpp v{b}, v{v}, v{v} quad_perm:{perm} {FULL}")
    for v, a, b in regs:
        k.e(f"v_cndmask_b32 v{v}, v{a}, v{b}, s[{mask}:{mask+1}]")
def cx4(k, regs, lo_ctl, hi_ctl):
    pad = "s_nop 1" if len(regs) == 1 else "s_nop 0"
    k.e(pad)
    for v, a, b in regs:
        k.e(f"v_max_u32_dpp v{a}, v{v}, v{v} {lo_ctl} row_mask:0xf bank_mask:0x5\nv_min_u32_dpp v{a}, v{v}, v{v} {hi_ctl} row_mask:0xf bank_mask:0xa")
    return [(a, v, b) for v, a, b in regs]
def sort8_full(k, regs, m1, m2):
    cx_quad(k, regs, "[1,0,3,2]", m1)
    cx_quad(k, regs, "[3,2,1,0]", m2)
    cx_quad(k, regs, "[1,0,3,2]", m1)
    regs = cx4(k, regs, "row_half_mirror", "row_half_mirror")
    cx_quad(k, regs, "[2,3,0,1]", m2)
    cx_quad(k, regs, "[1,0,3,2]", m1)
    return regs
def sort8_bitonic(k, r, m1, m2):
    regs = cx4(k, [r], "row_shl:4", "row_shr:4")
    cx_quad(k, regs, "[2,3,0,1]", m2)
    cx_quad(k, regs, "[1,0,3,2]", m1)
    return regs[0]
def top8_sorted_lists(k, A, B, t1, t2, m1, m2):
    k.e(f"s_nop 1\nv_max_u32_dpp v{A}, v{B}, v{A} row_half_mirror {FULL}")
    r = sort8_bitonic(k, (A, t1, t2), m1, m2)
    k.e(f"s_nop 1\nv_max_u32_dpp v{r[0]}, v{r[0]}, v{r[0]} row_mirror {FULL}")
    r = sort8_bitonic(k, r, m1, m2)
    for sw in ("v_permlane16_swap_b32", "v_permlane32_swap_b32"):
        k.e(f"v_mov_b32 v{B}, v{r[0]}\ns_nop 1\n{sw} v{r[0]}, v{B}\ns_nop 1\nv_max_u32_dpp v{r[0]}, v{B}, v{r[0]} row_half_mirror {FULL}")
        r = sort8_bitonic(k, r, m1, m2)
    return r[0]
```

```python
import sys
sys.path.insert(0, 'work')
import gen
from gen_common import *
def mk(name, lo, hi, **opt):
    s = gen.build(**opt)
    def stamp_store(slot, tag):
        return f"""    s_cmp_lg_u32 s2, 0
    s_cbranch_scc1 .pr_{tag}
    s_memrealtime s[90:91]
    s_load_dwordx2 s[92:93], s[0:1], 88
    s_waitcnt lgkmcnt(0)
    s_mov_b32 s94, {WS_BYTES}
    s_mov_b32 s95, 0x20000
    s_mov_b32 s96, {WS_DIAG + 128*slot}
    v_mov_b32 v100, s90
    v_mov_b32 v101, 0
    buffer_store_dword v100, v101, s[92:95], s96 offen sc1
.pr_{tag}:
"""
    s = s.replace("k1_qkv_kernel:\n", "k1_qkv_kernel:\n" + stamp_store(0, "a"))
    s = s.replace("k2_attn_kernel:\n", "k2_attn_kernel:\n" + stamp_store(1, "b"))
    s = s.replace("k3_out_kernel:\n", "k3_out_kernel:\n    s_memrealtime s[90:91]\n")
    enc = f"""    s_or_b32 s70, s2, s3
    s_cmp_lg_u32 s70, 0
    s_cbranch_scc1 .pr_c
    s_add_u32 s70, s8, {WS_DIAG}
    s_addc_u32 s71, s9, 0
    s_load_dword s72, s[70:71], 0
    s_load_dword s73, s[70:71], 128
    s_memrealtime s[74:75]
    s_waitcnt lgkmcnt(0)
    s_sub_u32 s76, s73, s72
    s_sub_u32 s77, s90, s73
    s_sub_u32 s78, s74, s90
    s_sub_u32 s79, s74, s72
    s_min_u32 s80, s{76 + lo}, 6000
    s_mul_i32 s80, s80, {hi}
.pr_spin:
    s_memrealtime s[82:83]
    s_waitcnt lgkmcnt(0)
    s_sub_u32 s84, s82, s74
    s_cmp_lt_u32 s84, s80
    s_cbranch_scc1 .pr_spin
.pr_c:
"""
    s = s.replace("    buffer_store_dwordx4 v[24:27], v13, s[16:19], s39 offen", enc + "    buffer_store_dwordx4 v[24:27], v13, s[16:19], s39 offen", 1)
    open(f"cdna_kernels/{name}.s", "w").write(s)
if __name__ == "__main__":
    mk("x_A", 0, 0)
    for i in range(4): mk(f"x_{'BCDE'[i]}", i, 4)
```
